```python
import torch

def _softmax(x, axis=-1):
    return torch.softmax(x, dim=axis)
def _gelu(x):
    return torch.nn.functional.gelu(x, approximate="tanh")
def _silu(x):
    return torch.nn.functional.silu(x)
def _sigmoid(x):
    return torch.sigmoid(x)
def _layernorm(x, axis=-1, eps=1e-5):
    m = x.mean(dim=axis, keepdim=True)
    v = x.var(dim=axis, keepdim=True, unbiased=False)
    return (x - m) / torch.sqrt(v + eps)
def _scatter_add(tgt, idx, src, axis=0):
    return tgt.clone().index_add_(axis, idx, src)
def _segment_sum(src, seg, n):
    out = torch.zeros((n,) + src.shape[1:], dtype=src.dtype)
    return out.index_add_(0, seg, src)
def _pad(x, pw):
    flat = tuple(v for pair in reversed(pw) for v in pair)
    return torch.nn.functional.pad(x, flat)

kernel_name = 'parallel_sum__ssm_conv_h3__dense_activation_relu__prompt'

def setup_inputs():

    _w = (lambda a: (lambda t: t.to(torch.bfloat16) if t.is_floating_point() else t)(torch.as_tensor(a)))
    def _A_setup():
        B, S, D = 1, 2048, 512
        ks = 4
        return {
            "q": _w((lambda *s: torch.randn(*s, dtype=torch.bfloat16) * 0.05)(B, S, D)),
            "k": _w((lambda *s: torch.randn(*s, dtype=torch.bfloat16) * 0.4)(B, S, D)),
            "v": _w((lambda *s: torch.randn(*s, dtype=torch.bfloat16) * 0.4)(B, S, D)),
            "shift_k": _w((lambda *s: torch.randn(*s, dtype=torch.bfloat16) * 0.4)(D, ks) * 0.5),
            "ssm_k": _w((lambda *s: torch.randn(*s, dtype=torch.bfloat16) * 1.6)(D, S) * (1.0 / S ** 0.5)),
            "ssm_D": _w((lambda *s: torch.randn(*s, dtype=torch.bfloat16) * 0.4)(D)),
        }
    _A_in = _A_setup()

    def _B_setup():
        B, S, D, Dff = 1, 2048, 512, 1376
        return {
            "x": _w((lambda *s: torch.randn(*s, dtype=torch.bfloat16) * 0.05)(B, S, D)),
            "w1": _w((lambda *s: torch.randn(*s, dtype=torch.bfloat16) * 0.05)(D, Dff)),
            "w2": _w((lambda *s: torch.randn(*s, dtype=torch.bfloat16) * 0.05)(Dff, D)),
        }
    _B_in = _B_setup()

    return {
        "A_q": _A_in["q"],
        "A_k": _A_in["k"],
        "A_v": _A_in["v"],
        "A_shift_k": _A_in["shift_k"],
        "A_ssm_k": _A_in["ssm_k"],
        "A_ssm_D": _A_in["ssm_D"],
        "B_x": _B_in["x"],
        "B_w1": _B_in["w1"],
        "B_w2": _B_in["w2"],
    }

def reference(A_q, A_k, A_v, A_shift_k, A_ssm_k, A_ssm_D, B_x, B_w1, B_w2):
    def _A_ref(q, k, v, shift_k, ssm_k, ssm_D):
        B, S, D = q.shape
        ks = shift_k.shape[-1]
        k_pad = _pad(k, ((0, 0), (ks - 1, 0), (0, 0)))
        k_shift = torch.zeros_like(k)
        for t in range(ks):
            k_shift = k_shift + k_pad[:, t:t + S, :] * shift_k[:, ks - 1 - t][None, None, :]
        kv = k_shift * v
        L = 2 * S
        kv_pad = _pad(kv, ((0, 0), (0, S), (0, 0)))
        kf_pad = _pad(ssm_k, ((0, 0), (0, S)))
        kv_f = (lambda x, axes=(-2,-1): torch.fft.rfft2(x.float(), dim=axes))(kv_pad[:, None, :, :], axes=(1, 2))
        kf_f = (lambda x, axes=(-2,-1): torch.fft.rfft2(x.float(), dim=axes))(kf_pad[:, None, :], axes=(1, 2))
        kf_f = (lambda x, *d: x.permute(*d))(kf_f, 1, 2, 0)
        y_f = kv_f * kf_f[None, :, :, :]
        y = (lambda x, s, axes=(-2,-1): torch.fft.irfft2(x, s=s, dim=axes).to(torch.bfloat16))(y_f, (1, L), axes=(1, 2))[:, 0, :S, :]
        y = y + kv * ssm_D[None, None, :]
        return q * y

    def _B_ref(x, w1, w2):
        h = torch.einsum("bsd,df->bsf", x, w1)
        zero = torch.zeros_like(h)
        h = torch.maximum(h, zero)
        return torch.einsum("bsf,fd->bsd", h, w2)

    x = A_q
    xn = _layernorm(x, axis=-1)
    return x + _A_ref(xn, A_k, A_v, A_shift_k, A_ssm_k, A_ssm_D) + _B_ref(xn, B_w1, B_w2)
```

```python
L=[]
def e(s):
    for x in s.strip().split("\n"): L.append(" "+x.strip())
def lab(s): L.append(s+":")
def vr(a,n,p="v"): return f"{p}{a}" if n==1 else f"{p}[{a}:{a+n-1}]"
def ar(a,n): return vr(a,n,"a")
def sr(a,n): return vr(a,n,"s")
WS_XN,WS_KVT,WS_W1F,WS_ZT,WS_HF=0,0x200000,0x400000,0x600000,0x800000
SZ_W1F,SZ_HF=0x158000,128*43*1024
ARG=dict(q=0,k=8,v=16,sk=24,h=32,D=40,w1=56,w2=64,out=72,dbg=80,ws=88)
def srd(d,p,size,off=0):
    if off: e(f"s_add_u32 s{d}, s{p}, {hex(off)}\ns_addc_u32 s{d+1}, s{p+1}, 0")
    elif d!=p: e(f"s_mov_b32 s{d}, s{p}\ns_mov_b32 s{d+1}, s{p+1}")
    e(f"s_mov_b32 s{d+2}, {hex(size)}\ns_mov_b32 s{d+3}, 0x20000")
def ldarg(d,name): e(f"s_load_dwordx2 s[{d}:{d+1}], s[0:1], {ARG[name]}")
def head(name): L.append(f".text\n.globl {name}\n.p2align 8\n.type {name},@function\n{name}:")
def desc(name,vg,acc,sg=96):
    L.append(f""".section .rodata,"a"
.p2align 6
.amdhsa_kernel {name}
  .amdhsa_next_free_vgpr {vg}
  .amdhsa_next_free_sgpr {sg}
  .amdhsa_accum_offset {acc}
  .amdhsa_group_segment_fixed_size 0
  .amdhsa_kernarg_size 96
  .amdhsa_user_sgpr_count 2
  .amdhsa_user_sgpr_kernarg_segment_ptr 1
  .amdhsa_system_sgpr_workgroup_id_x 1
.end_amdhsa_kernel""")
def mfma(d,a,b,c=None): e(f"v_mfma_f32_16x16x32_bf16 {d}, {a}, {b}, {c or d}")
def unpk(lo,hi,src,msk):
    e(f"v_lshlrev_b32 v{lo}, 16, v{src}\nv_and_b32 v{hi}, s{msk}, v{src}")
def rnd2(a,b,t,msk):
    e(f"v_cvt_pk_bf16_f32 v{t}, v{a}, v{b}"); unpk(a,b,t,msk)
```

```python
from base import *
def k1(name="prep_kernel"):
    head(name)
    e(f"""s_cmp_ge_u32 s2, 512
    s_cbranch_scc1 k1_end
    s_mov_b32 s40, 0xffff0000
    s_mov_b32 s41, 4096
    v_lshrrev_b32 v1, 6, v0
    v_and_b32 v2, 63, v0""")
    ldarg(44,"ws")
    e("v_readfirstlane_b32 s3, v1\ns_cmp_ge_u32 s2, 256\ns_cbranch_scc1 k1_ln")
    ldarg(4,"k"); ldarg(8,"v"); ldarg(12,"sk")
    e("""s_lshr_b32 s20, s2, 3
    s_and_b32 s21, s2, 7
    s_lshl_b32 s22, s20, 16
    s_lshl_b32 s23, s21, 7
    s_add_u32 s22, s22, s23
    v_and_b32 v3, 31, v0
    v_lshrrev_b32 v4, 5, v0
    v_lshlrev_b32 v5, 13, v4
    v_lshl_add_u32 v5, v3, 2, v5
    v_add_u32 v5, s22, v5
    v_subrev_u32 v6, 3072, v5
    s_lshl_b32 s24, s21, 9
    v_lshlrev_b32 v7, 4, v3
    v_add_u32 v7, s24, v7
    s_waitcnt lgkmcnt(0)""")
    srd(4,4,0x200000); srd(8,8,0x200000); srd(12,12,4096); srd(16,44,0x200000,WS_KVT)
    e("buffer_load_dwordx4 v[8:11], v7, s[12:15], 0 offen")
    for i in range(3): e(f"buffer_load_dword v{12+i}, v6, s[4:7], 0 offen offset:{1024*i}")
    for i in range(8): e(f"buffer_load_dword v{15+i}, v5, s[4:7], {'s41' if i>=4 else 0} offen offset:{1024*(i&3)}")
    for i in range(8): e(f"buffer_load_dword v{23+i}, v5, s[8:11], {'s41' if i>=4 else 0} offen offset:{1024*(i&3)}")
    e("""v_sub_u32 v90, 7, v4
    v_and_b32 v91, 7, v3
    v_xor_b32 v90, v90, v91
    v_lshlrev_b32 v90, 4, v90
    v_lshl_add_u32 v90, v3, 8, v90
    v_lshrrev_b32 v92, 3, v0
    v_and_b32 v93, 7, v0
    v_bfe_u32 v91, v0, 4, 3
    v_xor_b32 v91, v91, v93
    v_lshlrev_b32 v91, 4, v91
    v_lshl_add_u32 v91, v92, 7, v91
    s_lshl_b32 s25, s21, 18
    s_sub_u32 s26, 31, s20
    s_lshl_b32 s26, s26, 7
    s_add_u32 s25, s25, s26
    v_lshlrev_b32 v92, 12, v92
    v_lshl_add_u32 v92, v93, 4, v92
    v_add_u32 v92, s25, v92
    s_mov_b32 s27, 0x20000
    s_waitcnt vmcnt(19)""")
    for j in range(4):
        for c in range(2):
            s=8+2*c+j//2
            e(f"v_lshlrev_b32 v{32+2*j+c}, 16, v{s}" if j%2==0 else f"v_and_b32 v{32+2*j+c}, s40, v{s}")
    e("s_waitcnt vmcnt(8)")
    for i in range(11): unpk(40+2*i,41+2*i,12+i,40)
    for t in range(8):
        e(f"v_pk_mul_f32 {vr(62+2*t,2)}, {vr(40+2*t,2)}, {vr(38,2)}")
    for j in (2,1,0):
        for t in range(8):
            e(f"v_pk_fma_f32 {vr(62+2*t,2)}, {vr(40+2*(t+3-j),2)}, {vr(32+2*j,2)}, {vr(62+2*t,2)}")
    e("s_waitcnt vmcnt(0)")
    for t in range(8): unpk(40+2*t,41+2*t,23+t,40)
    for t in range(8): e(f"v_pk_mul_f32 {vr(62+2*t,2)}, {vr(62+2*t,2)}, {vr(40+2*t,2)}")
    for c in range(2):
        for p in range(4): e(f"v_cvt_pk_bf16_f32 v{80+4*c+p}, v{62+2*(7-2*p)+c}, v{62+2*(6-2*p)+c}")
    e("""ds_write_b128 v90, v[80:83]
    ds_write_b128 v90, v[84:87] offset:128
    s_waitcnt lgkmcnt(0)
    s_barrier
    ds_read_b128 v[8:11], v91
    ds_read_b128 v[12:15], v91 offset:4096
    s_waitcnt lgkmcnt(1)
    buffer_store_dwordx4 v[8:11], v92, s[16:19], 0 offen
    s_waitcnt lgkmcnt(0)
    buffer_store_dwordx4 v[12:15], v92, s[16:19], s27 offen
    s_endpgm""")
    lab("k1_ln")
    ldarg(4,"q"); ldarg(8,"w1")
    e("""s_sub_u32 s20, s2, 256
    s_lshl_b32 s21, s20, 13
    s_lshl_b32 s22, s3, 8
    s_add_u32 s21, s21, s22
    v_and_b32 v3, 7, v0
    v_lshrrev_b32 v4, 3, v2
    v_lshlrev_b32 v5, 10, v3
    v_lshl_add_u32 v5, v4, 4, v5
    v_add_u32 v5, s21, v5
    s_lshl_b32 s23, s20, 2
    s_add_u32 s23, s23, s3
    s_mul_i32 s24, s23, 1525
    s_lshr_b32 s24, s24, 16
    s_mul_i32 s25, s24, 43
    s_sub_u32 s25, s23, s25
    s_mul_i32 s26, s24, 32*2752
    s_lshl_b32 s27, s25, 6
    s_add_u32 s26, s26, s27
    v_lshrrev_b32 v6, 4, v2
    v_mul_u32_u24 v6, 8*2752, v6
    v_and_b32 v7, 15, v0
    v_lshl_add_u32 v6, v7, 2, v6
    v_add_u32 v6, s26, v6
    s_waitcnt lgkmcnt(0)""")
    srd(4,4,0x200000); srd(8,8,512*2752); srd(12,44,0x200000,WS_XN); srd(16,44,SZ_W1F,WS_W1F)
    e("""buffer_load_dwordx4 v[8:11], v5, s[4:7], 0 offen
    buffer_load_dwordx4 v[12:15], v5, s[4:7], 0 offen offset:128""")
    for i in range(8):
        e(f"s_mov_b32 s{28+i}, {2752*i}")
    for i in range(8):
        e(f"buffer_load_dword v{16+i}, v6, s[8:11], s{28+i} offen")
    e("""s_lshr_b32 s21, s20, 1
    s_lshl_b32 s21, s21, 14
    s_and_b32 s22, s20, 1
    s_lshl_b32 s22, s22, 7
    s_add_u32 s21, s21, s22
    s_lshl_b32 s22, s3, 12
    s_add_u32 s21, s21, s22
    v_lshlrev_b32 v5, 8, v4
    v_lshl_add_u32 v5, v3, 4, v5
    v_add_u32 v5, s21, v5
    s_lshl_b32 s25, s25, 15
    s_lshl_b32 s26, s24, 11
    s_add_u32 s25, s25, s26
    v_lshlrev_b32 v6, 4, v2
    v_add_u32 v6, s25, v6
    v_lshlrev_b32 v7, 5, v3
    s_lshl_b32 s22, s3, 3
    v_add_u32 v60, s22, v7
    s_waitcnt vmcnt(8)""")
    for i in range(8): unpk(32+2*i,33+2*i,8+i,40)
    def red(r,t):
        e(f"""s_nop 1
        v_add_f32_dpp v{r}, v{r}, v{r} row_ror:8 row_mask:0xf bank_mask:0xf
        v_mov_b32 v{t}, v{r}
        s_nop 1
        v_permlane16_swap_b32 v{r}, v{t}
        v_add_f32 v{r}, v{r}, v{t}
        v_mov_b32 v{t}, v{r}
        s_nop 1
        v_permlane32_swap_b32 v{r}, v{t}
        v_add_f32 v{r}, v{r}, v{t}""")
    e("v_pk_add_f32 v[48:49], v[32:33], v[34:35]")
    for i in range(2,8): e(f"v_pk_add_f32 v[48:49], v[48:49], {vr(32+2*i,2)}")
    e("v_add_f32 v48, v48, v49"); red(48,49)
    e("v_mul_f32 v48, 0x3c000000, v48\nv_mov_b32 v49, v48")
    for i in range(8):
        e(f"v_pk_add_f32 v[50:51], {vr(32+2*i,2)}, v[48:49] neg_lo:[0,1] neg_hi:[0,1]")
        e("v_pk_mul_f32 v[52:53], v[50:51], v[50:51]" if i==0 else "v_pk_fma_f32 v[52:53], v[50:51], v[50:51], v[52:53]")
    e("v_add_f32 v49, v52, v53"); red(49,50)
    e("""ds_write_b64 v60, v[48:49]
    s_mov_b32 s36, 0x05040100
    s_mov_b32 s37, 0x07060302
    s_waitcnt vmcnt(0)""")
    for j in range(2):
        for p in range(4): e(f"v_perm_b32 v{24+4*j+p}, v{16+2*p+1}, v{16+2*p}, s{36+j}")
    e("""s_cmp_ge_u32 s23, 688
    s_cbranch_scc1 k1_now1
    buffer_store_dwordx4 v[24:27], v6, s[16:19], 0 offen
    buffer_store_dwordx4 v[28:31], v6, s[16:19], 0 offen offset:1024""")
    lab("k1_now1")
    e("""s_waitcnt lgkmcnt(0)
    s_barrier
    ds_read_b128 v[48:51], v7
    ds_read_b128 v[52:55], v7 offset:16
    s_waitcnt lgkmcnt(0)
    v_add_f32 v56, v48, v50
    v_add_f32 v57, v52, v54
    v_add_f32 v56, v56, v57
    v_mul_f32 v56, 0x3e800000, v56
    v_add_f32 v49, v49, v51
    v_add_f32 v53, v53, v55
    v_add_f32 v49, v49, v53
    v_sub_f32 v48, v48, v56
    v_sub_f32 v50, v50, v56
    v_sub_f32 v52, v52, v56
    v_sub_f32 v54, v54, v56
    v_mul_f32 v48, v48, v48
    v_fmac_f32 v48, v50, v50
    v_fmac_f32 v48, v52, v52
    v_fmac_f32 v48, v54, v54
    v_fmac_f32 v49, 0x43000000, v48
    v_mul_f32 v57, 0x3b000000, v49""")
    rnd2(56,57,58,40)
    e("v_add_f32 v57, 0x3727c5ac, v57"); rnd2(57,59,58,40)
    e("v_sqrt_f32 v57, v57\ns_nop 0"); rnd2(57,59,58,40)
    e("v_rcp_f32 v58, v57\nv_mov_b32 v57, v56\nv_mov_b32 v59, v58")
    for i in range(8):
        a=32+2*i
        e(f"v_pk_add_f32 {vr(a,2)}, {vr(a,2)}, v[56:57] neg_lo:[0,1] neg_hi:[0,1]")
        rnd2(a,a+1,48,40)
        e(f"v_pk_mul_f32 {vr(a,2)}, {vr(a,2)}, v[58:59]\nv_cvt_pk_bf16_f32 v{8+i}, v{a}, v{a+1}")
    e("""buffer_store_dwordx4 v[8:11], v5, s[12:15], 0 offen
    buffer_store_dwordx4 v[12:15], v5, s[12:15], 0 offen offset:2048""")
    lab("k1_end"); e("s_endpgm")
    desc(name,96,96,64)
    return f"; @launch kernel={name} grid=(512,1,1) block=(256,1,1) lds=8192"
```

```python
from base import *
SLOT0,SLOTS,OOFF,UOFF,RED=98304,12928,4160,8320,124160
def k2(name="mid_kernel"):
    head(name)
    e("""s_cmp_ge_u32 s2, 256
    s_cbranch_scc1 k2_end
    v_lshrrev_b32 v1, 6, v0
    v_and_b32 v2, 63, v0""")
    ldarg(44,"ws"); ldarg(4,"h"); ldarg(46,"D")
    e(f"""v_readfirstlane_b32 s3, v1
    s_mov_b32 s40, 0xffff0000
    s_and_b32 s28, s2, 7
    s_lshr_b32 s29, s2, 3
    s_lshr_b32 s30, s28, 1
    s_lshl_b32 s30, s30, 2
    s_and_b32 s31, s29, 3
    s_add_u32 s30, s30, s31
    s_and_b32 s31, s28, 1
    s_lshl_b32 s31, s31, 3
    s_lshr_b32 s32, s29, 2
    s_add_u32 s31, s31, s32
    s_mul_i32 s31, s31, 3
    s_min_u32 s31, s31, 40
    s_lshr_b32 s33, s3, 1
    s_and_b32 s34, s3, 1
    s_lshl_b32 s35, s2, 13
    s_lshl_b32 s36, s3, 11
    s_add_u32 s35, s35, s36
    s_mul_i32 s36, s33, {SLOTS}
    s_add_u32 s36, s36, {SLOT0}
    s_lshl_b32 s37, s34, 11
    s_add_u32 s37, s37, s36
    v_lshlrev_b32 v3, 4, v2
    v_add_u32 v4, s35, v3
    v_subrev_u32 v5, 4, v4
    v_add_u32 v6, 1020, v4
    s_lshl_b32 s38, s2, 2
    s_add_u32 m0, s37, {UOFF}
    s_waitcnt lgkmcnt(0)
    s_load_dword s39, s[46:47], s38""")
    srd(4,4,0x200000); srd(8,44,0x200000,WS_KVT); srd(12,44,SZ_W1F,WS_W1F); srd(16,44,0x200000,WS_XN)
    e("""buffer_load_dwordx4 v[144:147], v4, s[4:7], 0 offen
    buffer_load_dword v152, v5, s[4:7], 0 offen
    buffer_load_dwordx4 v[148:151], v4, s[4:7], 0 offen offset:1024
    buffer_load_dword v153, v6, s[4:7], 0 offen
    buffer_load_dwordx4 v4, s[8:11], 0 offen lds
    buffer_load_dwordx4 v4, s[8:11], 0 offen offset:1024 lds
    s_lshl_b32 s41, s31, 15
    v_add_u32 v7, s41, v3
    s_lshl_b32 s41, s30, 2
    s_add_u32 s41, s41, s3
    s_lshl_b32 s42, s41, 15
    v_add_u32 v8, s42, v3
    v_add_u32 v9, 0x4000, v8
    s_lshl_b32 s43, s3, 11""")
    for g in range(4):
        e(f"s_mov_b32 s48, {g*4096}")
        for bl in range(3):
            e(f"""s_add_u32 m0, s43, {bl*32768+g*8192}
            s_nop 0
            buffer_load_dwordx4 v7, s[12:15], m0 offen lds
            buffer_load_dwordx4 v7, s[12:15], m0 offen offset:1024 lds""")
        for s in range(4):
            for tt in range(2):
                e(f"buffer_load_dwordx4 {ar(((4*g+s)*2+tt)*4,4)}, v{8+tt}, s[16:19], s48 offen offset:{s*1024}")
    srd(20,44,0x200000,WS_ZT); srd(24,44,SZ_HF,WS_HF)
    e(f"""v_mov_b32 v156, 0
    v_mov_b32 v157, 0
    v_mov_b32 v158, 0
    v_mov_b32 v159, 0
    v_min_u32 v10, 29, v2
    v_lshlrev_b32 v10, 4, v10
    v_add_u32 v10, s36, v10
    v_bfe_u32 v11, v2, 1, 1
    v_mul_u32_u24 v11, {OOFF}, v11
    v_and_b32 v12, 1, v2
    v_lshl_add_u32 v11, v12, 4, v11
    v_add_u32 v11, s36, v11
    ds_write_b128 v10, v[156:159] offset:{UOFF+4096}
    ds_write_b128 v11, v[156:159]
    v_add_u32 v10, s37, v3
    v_and_b32 v13, 15, v2
    v_lshrrev_b32 v14, 4, v2
    v_xor_b32 v12, 1, v12
    v_mul_u32_u24 v12, {OOFF}, v12
    v_or_b32 v15, 1, v13
    v_lshl_add_u32 v12, v15, 1, v12
    v_lshl_add_u32 v12, v14, 4, v12
    s_lshl_b32 s49, s34, 8
    s_add_u32 s49, s49, s36
    s_add_u32 s50, s49, 2
    v_add_u32 v16, s50, v12
    v_add_u32 v17, 1024, v16
    v_add_u32 v18, 2048, v16
    v_add_u32 v19, 3072, v16
    v_lshlrev_b32 v20, 5, v13
    v_lshlrev_b32 v21, 4, v14
    v_sub_u32 v21, v21, v20
    s_add_u32 s50, s49, {UOFF+480}
    v_add_u32 v21, s50, v21
    v_lshl_add_u32 v22, v14, 3, v20
    s_lshl_b32 s50, s34, 11
    s_sub_u32 s50, s36, s50
    s_add_u32 s50, s50, {UOFF+504+2048}
    v_sub_u32 v23, s50, v22
    v_add_u32 v22, s35, v22
    s_lshl_b32 s50, s3, 12
    s_add_u32 s51, s50, {RED}
    v_add_u32 v24, s51, v3
    s_xor_b32 s50, s50, 4096
    s_add_u32 s51, s50, {RED}
    v_add_u32 v25, s51, v3
    v_add_u32 v26, 0x10000, v3
    s_mul_i32 s50, s41, 86
    s_add_u32 s50, s50, s31
    s_lshl_b32 s50, s50, 10
    v_add_u32 v27, s50, v3
    v_add_u32 v28, 43*1024, v27
    v_or_b32 v29, s34, v2
    v_cmp_ne_u32 vcc, 0, v29
    s_waitcnt vmcnt(58)
    s_nop 0
    v_cndmask_b32 v152, 0, v152, vcc
    ds_write_b128 v10, v[144:147] offset:32
    ds_write_b128 v10, v[148:151] offset:1056""")
    for i in range(2):
        for p in range(4):
            e(f"v_alignbyte_b32 v{160+4*i+p}, v{144+4*i+p}, v{152+i if p==0 else 144+4*i+p-1}, 2")
        e(f"ds_write_b128 v10, {vr(160+4*i,4)} offset:{OOFF+32+1024*i}")
    e("s_waitcnt vmcnt(56) lgkmcnt(0)\ns_barrier")
    A=lambda buf,a:128+buf*64+a*4
    B=lambda buf,d:128+buf*64+32+d*4
    def reads(bi):
        buf=bi&1
        def ra(a):
            o=(a&1)*128+16*bi
            return [f"ds_read2_b32 {ar(A(buf,a),2)}, v{16+a//2} offset0:{o} offset1:{o+1}",
                    f"ds_read2_b32 {ar(A(buf,a)+2,2)}, v{16+a//2} offset0:{o+2} offset1:{o+3}"]
        r=ra(0)+[f"ds_read_b128 {ar(B(buf,d),4)}, v21 offset:{2*(1792-256*d)+64*bi}" for d in range(8)]
        for a in range(1,8): r+=ra(a)
        return r
    for x in reads(0): e(x)
    for bi in range(4):
        buf=bi&1; nxt=reads(bi+1) if bi<3 else []
        if bi==3: nxt=[f"ds_read_b64 {vr(144+2*i,2)}, v23 offset:{2*(768-256*i)}" for i in range(4)]
        if bi>0: e("s_waitcnt lgkmcnt(0)")
        for a in range(8):
            if bi==0 and a<3: e(f"s_waitcnt lgkmcnt({[14,12,0][a]})")
            for c in range(a,8):
                acc=vr(64+4*c,4)
                mfma(acc,ar(A(buf,a),4),ar(B(buf,c-a),4),"0" if bi==0 and a==0 else acc)
                if bi>0 or a>=2:
                    for _ in range(2 if bi==0 and a<4 else 1):
                        if nxt: e(nxt.pop(0))
        assert not nxt
    e("s_cmp_eq_u32 s34, 0\ns_cbranch_scc1 k2_h0\ns_nop 4")
    for i in range(4): e(f"ds_write_b128 v24, {vr(64+4*i,4)} offset:{1024*i}")
    e("s_nop 1")
    for i in range(16): e(f"v_mov_b32 v{64+i}, v{80+i}")
    e("s_branch k2_h1"); lab("k2_h0"); e("s_nop 4")
    for i in range(4): e(f"ds_write_b128 v24, {vr(80+4*i,4)} offset:{1024*i}")
    lab("k2_h1")
    e("""s_lshl_b32 s50, s33, 4
    s_waitcnt vmcnt(42) lgkmcnt(0)
    s_lshr_b32 s39, s39, s50
    s_lshl_b32 s39, s39, 16
    s_barrier""")
    for i in range(4): e(f"ds_read_b128 {vr(80+4*i,4)}, v25 offset:{1024*i}")
    W=lambda s,f:128+(s&1)*24+f*4
    def wreads(s): return [f"ds_read_b128 {ar(W(s,f),4)}, v{26 if f>=4 else 3} offset:{((f>>1)&1)*32768+s*2048+(f&1)*1024}" for f in range(6)]
    for x in wreads(0): e(x)
    ep=[]
    for i in range(4):
        y=64+4*i; t=160
        ep+= [f"v_pk_add_f32 {vr(y,2)}, {vr(y,2)}, {vr(y+16,2)}", f"v_pk_add_f32 {vr(y+2,2)}, {vr(y+2,2)}, {vr(y+18,2)}"]
        u=144+2*i
        ep+= [f"v_and_b32 v{t}, s40, v{u+1}",f"v_lshlrev_b32 v{t+1}, 16, v{u+1}",f"v_and_b32 v{t+2}, s40, v{u}",f"v_lshlrev_b32 v{t+3}, 16, v{u}"]
        ep+= [f"v_mul_f32 v{t+r}, s39, v{t+r}" for r in range(4)]
        for a in (y,y+2,t,t+2):
            ep+=[f"v_cvt_pk_bf16_f32 v168, v{a}, v{a+1}",f"v_lshlrev_b32 v{a}, 16, v168",f"v_and_b32 v{a+1}, s40, v168"]
        ep+= [f"v_add_f32 v{y+r}, v{y+r}, v{t+r}" for r in range(4)]
        ep+= [f"v_cvt_pk_bf16_f32 v{170+2*i}, v{y}, v{y+1}",f"v_cvt_pk_bf16_f32 v{171+2*i}, v{y+2}, v{y+3}",
              f"buffer_store_dwordx2 {vr(170+2*i,2)}, v22, s[20:23], 0 offen offset:{512*i}"]
    nst=0
    G=lambda f,tt:96+(f*2+tt)*4
    for s in range(16):
        e("s_waitcnt lgkmcnt(0)")
        if s%4==3 and s<15:
            e(f"s_waitcnt vmcnt({(2-s//4)*14+nst})\ns_barrier")
        nxt=wreads(s+1) if s<15 else []
        for f in range(6):
            for tt in range(2):
                acc=vr(G(f,tt),4)
                mfma(acc,ar(W(s,f),4),ar((s*2+tt)*4,4),"0" if s==0 else acc)
                if nxt: e(nxt.pop(0))
                for _ in range(2):
                    if ep:
                        x=ep.pop(0); e(x); nst+=x.startswith("buffer_store")
    assert not ep
    e("s_nop 4")
    for bl in range(3):
        for tt in range(2):
            d=144+(bl*2+tt)*4
            for r in range(4): e(f"v_cvt_pk_bf16_f32 v{d+r}, v{G(2*bl,tt)+r}, v{G(2*bl+1,tt)+r}")
            for r in range(4): e(f"v_pk_max_i16 v{d+r}, v{d+r}, 0")
            e(f"buffer_store_dwordx4 {vr(d,4)}, v{27+tt}, s[24:27], 0 offen offset:{1024*bl}")
    lab("k2_end"); e("s_endpgm")
    desc(name,512,256,64)
    return f"; @launch kernel={name} grid=(256,1,1) block=(256,1,1) lds={RED+16384}"
```

```python
from base import *
def k3(name="fin_kernel",NB=5):
    head(name)
    e("""s_cmp_ge_u32 s2, 256
    s_cbranch_scc1 k3_end
    v_lshrrev_b32 v1, 6, v0
    v_and_b32 v2, 63, v0""")
    ldarg(44,"ws"); ldarg(4,"w2"); ldarg(12,"q"); ldarg(24,"out")
    e("""v_readfirstlane_b32 s3, v1
    s_mov_b32 s40, 0xffff0000
    s_mov_b32 s36, 0x05040100
    s_mov_b32 s37, 0x07060302
    s_and_b32 s28, s2, 7
    s_lshr_b32 s29, s2, 3
    s_lshr_b32 s30, s28, 1
    s_lshl_b32 s30, s30, 3
    s_and_b32 s31, s29, 7
    s_add_u32 s30, s30, s31
    s_and_b32 s31, s28, 1
    s_lshl_b32 s31, s31, 2
    s_lshr_b32 s32, s29, 3
    s_add_u32 s31, s31, s32
    s_mul_i32 s33, s3, 11
    v_and_b32 v13, 15, v2
    v_lshrrev_b32 v14, 4, v2
    v_lshlrev_b32 v3, 4, v2
    s_mul_i32 s34, s30, 172
    s_add_u32 s34, s34, s33
    s_lshl_b32 s34, s34, 10
    v_add_u32 v4, s34, v3
    v_add_u32 v5, 43*1024, v4
    v_add_u32 v6, 86*1024, v4
    v_add_u32 v7, 129*1024, v4
    s_lshl_b32 s34, s33, 15
    s_lshl_b32 s35, s31, 7
    s_add_u32 s34, s34, s35
    v_lshlrev_b32 v8, 13, v14
    v_lshl_add_u32 v8, v13, 3, v8
    v_add_u32 v8, s34, v8
    v_add_u32 v9, 4096, v8
    s_waitcnt lgkmcnt(0)""")
    srd(4,4,1376*1024); srd(8,44,SZ_HF,WS_HF)
    A=lambda s,m:64+(s%(NB+1))*16+m*4
    R=lambda s,i:64+(s%(NB+1))*16+i*2
    def loads(s):
        r=[f"s_mov_b32 s48, {s*32768}"]
        r+=[f"buffer_load_dwordx2 {vr(R(s,i),2)}, v{8+i//4}, s[4:7], s48 offen offset:{(i&3)*1024}" for i in range(8)]
        r+=[f"s_mov_b32 s49, {s*1024}"]
        r+=[f"buffer_load_dwordx4 {ar(A(s,m),4)}, v{4+m}, s[8:11], s49 offen" for m in range(4)]
        return r
    for s in range(NB):
        for x in loads(s): e(x)
    srd(12,12,0x200000); srd(16,44,0x200000,WS_XN); srd(20,44,0x200000,WS_ZT); srd(24,24,0x200000)
    e("""s_lshl_b32 s34, s30, 2
    s_add_u32 s34, s34, s3
    s_lshl_b32 s35, s34, 14
    s_lshl_b32 s38, s31, 7
    s_add_u32 s38, s38, s35
    v_lshlrev_b32 v10, 12, v14
    v_lshl_add_u32 v10, v13, 3, v10
    v_add_u32 v10, s38, v10
    s_lshl_b32 s38, s31, 11
    s_add_u32 s38, s38, s35
    v_lshrrev_b32 v11, 1, v13
    v_lshlrev_b32 v11, 8, v11
    v_and_b32 v12, 1, v13
    v_lshl_add_u32 v11, v12, 3, v11
    v_lshl_add_u32 v11, v14, 6, v11
    v_add_u32 v11, s38, v11
    s_lshl_b32 s38, s31, 18
    s_lshl_b32 s35, s34, 5
    s_add_u32 s38, s38, s35
    v_lshlrev_b32 v12, 14, v13
    v_lshl_add_u32 v12, v14, 3, v12
    v_add_u32 v12, s38, v12
    s_mov_b32 s50, 4096
    s_mov_b32 s51, 8192
    s_mov_b32 s52, 12288
    s_lshl_b32 s38, s3, 14
    v_add_u32 v15, s38, v3
    s_lshl_b32 s38, s3, 12
    v_add_u32 v16, s38, v3""")
    epl=[f"buffer_load_dwordx2 {vr(32+2*r,2)}, v10, s[12:15], 0 offen offset:{1024*r}" for r in range(4)]
    epl+=[f"buffer_load_dwordx2 {vr(40+2*r,2)}, v11, s[16:19], 0 offen offset:{16*r}" for r in range(4)]
    epl+=[f"buffer_load_dwordx2 {vr(48+2*j,2)}, v12, s[20:23], {['0','s50','s51','s52'][j]} offen" for j in range(4)]
    P=lambda s,j:176+(s&1)*16+j*4
    def perms(s): return [f"v_perm_b32 v{P(s,j)+p}, v{R(s,2*p+1)+j//2}, v{R(s,2*p)+j//2}, s{36+(j&1)}" for j in range(4) for p in range(4)]
    issued=NB*12
    def wait(s): e(f"s_waitcnt vmcnt({min(63,issued-(s+1)*12)})")
    wait(0)
    for x in perms(0): e(x)
    for s in range(11):
        ld=loads(s+NB) if s+NB<11 else (epl if s+NB==11 else [])
        if s==10: e("s_cmp_eq_u32 s3, 3\ns_cbranch_scc1 k3_skip")
        pm=perms(s+1) if s<10 else []
        n=0
        for j in range(4):
            for m in range(4):
                acc=ar((m*4+j)*4,4)
                if n==0: e("s_nop 0")
                mfma(acc,ar(A(s,m),4),vr(P(s,j),4),"0" if s==0 else acc)
                n+=1
                if n<=7:
                    for _ in range(2):
                        if ld:
                            x=ld.pop(0); e(x); issued+=x.startswith("buffer")
                if n==8 and pm: wait(s+1)
                if n>=8:
                    for _ in range(2):
                        if pm: e(pm.pop(0))
        assert not ld and not pm
    lab("k3_skip")
    e("s_nop 7")
    for m in range(4):
        e(f"s_cmp_eq_u32 s3, {m}\ns_cbranch_scc1 k3_own{m}")
        for j in range(4): e(f"ds_write_b128 v15, {ar((m*4+j)*4,4)} offset:{m*4096+j*1024}")
        e(f"s_branch k3_nx{m}"); lab(f"k3_own{m}")
        for i in range(16): e(f"v_accvgpr_read_b32 v{64+i}, a{m*16+i}")
        lab(f"k3_nx{m}")
    e("s_waitcnt vmcnt(0) lgkmcnt(0)\ns_barrier")
    for k in range(1,4):
        e(f"s_add_u32 s38, s3, {k}\ns_and_b32 s38, s38, 3\ns_lshl_b32 s38, s38, 14\nv_add_u32 v17, s38, v16")
        for j in range(4): e(f"ds_read_b128 {vr(64+16*k+4*j,4)}, v17 offset:{j*1024}")
    for r in range(4):
        for h in range(2):
            unpk(128+4*r+2*h,129+4*r+2*h,32+2*r+h,40); unpk(144+4*r+2*h,145+4*r+2*h,40+2*r+h,40)
    for j in range(4):
        for h in range(2): unpk(160+8*h+j,164+8*h+j,48+2*j+h,40)
    for i in range(0,16,2):
        e(f"v_pk_mul_f32 {vr(144+i,2)}, {vr(144+i,2)}, {vr(160+i,2)}"); rnd2(144+i,145+i,18,40)
        e(f"v_pk_add_f32 {vr(128+i,2)}, {vr(128+i,2)}, {vr(144+i,2)}"); rnd2(128+i,129+i,18,40)
    for k in range(1,4):
        e(f"s_waitcnt lgkmcnt({12-4*k})")
        for i in range(0,16,2): e(f"v_pk_add_f32 {vr(64+i,2)}, {vr(64+i,2)}, {vr(64+16*k+i,2)}")
    for i in range(0,16,2): rnd2(64+i,65+i,18,40)
    for r in range(4):
        for j in range(4): e(f"v_add_f32 v{128+4*r+j}, v{128+4*r+j}, v{64+4*j+r}")
        for h in range(2): e(f"v_cvt_pk_bf16_f32 v{32+2*r+h}, v{128+4*r+2*h}, v{129+4*r+2*h}")
        e(f"buffer_store_dwordx2 {vr(32+2*r,2)}, v10, s[24:27], 0 offen offset:{1024*r}")
    lab("k3_end"); e("s_endpgm")
    desc(name,512,256,64)
    return f"; @launch kernel={name} grid=(256,1,1) block=(256,1,1) lds=65536"
```

```python
import sys
from base import *
import k1,k2,k3
out=sys.argv[1] if len(sys.argv)>1 else "parallel_sum__ssm_conv_h3__dense_activation_relu__prompt.s"
extra=int(sys.argv[2]) if len(sys.argv)>2 else 0
hd=[k1.k1(),k2.k2(),k3.k3()]
for i in range(extra):
    head(f"nop{i}_kernel"); e("s_endpgm"); desc(f"nop{i}_kernel",8,8,16)
    hd.insert(1,f"; @launch kernel=nop{i}_kernel grid=(256,1,1) block=(256,1,1) lds=0")
open(out,"w").write("\n".join(hd)+'\n.amdgcn_target "amdgcn-amd-amdhsa--gfx950"\n'+"\n".join(L)+"\n")
```
